```python
import torch

def _softmax(x, axis=-1):
    return torch.softmax(x, dim=axis)
def _gelu(x):
    return torch.nn.functional.gelu(x, approximate="tanh")
def _silu(x):
    return torch.nn.functional.silu(x)
def _sigmoid(x):
    return torch.sigmoid(x)
def _layernorm(x, axis=-1, eps=1e-5):
    m = x.mean(dim=axis, keepdim=True)
    v = x.var(dim=axis, keepdim=True, unbiased=False)
    return (x - m) / torch.sqrt(v + eps)
def _scatter_add(tgt, idx, src, axis=0):
    return tgt.clone().index_add_(axis, idx, src)
def _segment_sum(src, seg, n):
    out = torch.zeros((n,) + src.shape[1:], dtype=src.dtype)
    return out.index_add_(0, seg, src)
def _pad(x, pw):
    flat = tuple(v for pair in reversed(pw) for v in pair)
    return torch.nn.functional.pad(x, flat)

kernel_name = 'concat_heads__softmax_full_mha__linear_attn_block__prompt'

def setup_inputs():

    _w = (lambda a: (lambda t: t.to(torch.bfloat16) if t.is_floating_point() else t)(torch.as_tensor(a)))
    def _A_setup():
        B, S, D = 1, 2048, 512
        return {
            "x": _w((lambda *s: torch.randn(*s, dtype=torch.bfloat16) * 0.2)(B, S, D)),
            "wqkv": _w((lambda *s: torch.randn(*s, dtype=torch.bfloat16) * 0.2)(D, 3 * D)),
            "wo": _w((lambda *s: torch.randn(*s, dtype=torch.bfloat16) * 0.05)(D, D)),
        }
    _A_in = _A_setup()

    def _B_setup():
        B, S, D = 1, 2048, 512
        return {
            "x": _w((lambda *s: torch.randn(*s, dtype=torch.bfloat16) * 0.05)(B, S, D)),
            "wqkv": _w((lambda *s: torch.randn(*s, dtype=torch.bfloat16) * 1.6)(D, 3 * D)),
            "wo": _w((lambda *s: torch.randn(*s, dtype=torch.bfloat16) * 0.05)(D, D)),
        }
    _B_in = _B_setup()

    return {
        "A_x": _A_in["x"],
        "A_wqkv": _A_in["wqkv"],
        "A_wo": _A_in["wo"],
        "B_x": _B_in["x"],
        "B_wqkv": _B_in["wqkv"],
        "B_wo": _B_in["wo"],
    }

def reference(A_x, A_wqkv, A_wo, B_x, B_wqkv, B_wo):
    def _A_ref(x, wqkv, wo):
        B, S, D = x.shape
        H = 32; Dh = D // H
        qkv = (lambda x, *d: x.permute(*d))((x @ wqkv).reshape(B, S, 3, H, Dh), 2, 0, 3, 1, 4)
        q, k, v = qkv[0], qkv[1], qkv[2]
        scale = Dh ** -0.5
        scores = torch.einsum("bhqd,bhkd->bhqk", q, k) * scale
        p = _softmax(scores, axis=-1)
        o = torch.einsum("bhqk,bhkd->bhqd", p, v)
        return (lambda x, *d: x.permute(*d))(o, 0, 2, 1, 3).reshape(B, S, D) @ wo

    def _B_ref(x, wqkv, wo):
        B, S, D = x.shape
        H = 32; Dh = D // H
        qkv = (lambda x, *d: x.permute(*d))((x @ wqkv).reshape(B, S, 3, H, Dh), 2, 0, 3, 1, 4)
        q, k, v = qkv[0], qkv[1], qkv[2]
        phi = lambda t: torch.where(t > 0, t + 1, torch.exp(t)) + 1e-6
        pq, pk = phi(q), phi(k)
        kv = torch.einsum("bhsd,bhse->bhde", pk, v)
        z = torch.einsum("bhsd->bhd", pk)
        num = torch.einsum("bhqd,bhde->bhqe", pq, kv)
        den = torch.einsum("bhqd,bhd->bhq", pq, z)[..., None] + 1e-6
        o = num / den
        return (lambda x, *d: x.permute(*d))(o, 0, 2, 1, 3).reshape(B, S, D) @ wo

    a = _A_ref(A_x, A_wqkv, A_wo)
    b = _B_ref(B_x, B_wqkv, B_wo)
    return torch.concatenate([a, b], axis=-1)
```

```python
class Asm:
    def __init__(self):
        self.L = []
        self.uid = 0
    def __call__(self, s):
        for line in s.split("\n"):
            line = line.strip()
            if line:
                self.L.append(line if line.endswith(":") or line.startswith(".") or line.startswith(";") else "    " + line)
    def c(self, s):
        self.L.append("    ; " + s)
    def label(self, base):
        self.uid += 1
        return f"L{base}_{self.uid}"
    def text(self):
        return "\n".join(self.L) + "\n"

def vr(b, n):
    return f"v[{b}:{b+n-1}]" if n > 1 else f"v{b}"
def sr(b, n):
    return f"s[{b}:{b+n-1}]" if n > 1 else f"s{b}"

def kernel_head(a, name):
    a(f".globl {name}\n.p2align 8\n.type {name},@function\n{name}:")

def kernel_desc(name, vgpr, sgpr=96):
    acc = (vgpr + 3) // 4 * 4
    return f""".p2align 6
.amdhsa_kernel {name}
  .amdhsa_next_free_vgpr {vgpr}
  .amdhsa_next_free_sgpr {sgpr}
  .amdhsa_accum_offset {acc}
  .amdhsa_group_segment_fixed_size 0
  .amdhsa_kernarg_size 72
  .amdhsa_user_sgpr_count 2
  .amdhsa_user_sgpr_kernarg_segment_ptr 1
  .amdhsa_system_sgpr_workgroup_id_x 1
.end_amdhsa_kernel
"""

def srd(a, d, lo, hi, nbytes):
    a(f"s_mov_b32 s{d}, s{lo}\ns_mov_b32 s{d+1}, s{hi}\ns_mov_b32 s{d+2}, {nbytes:#x}\ns_mov_b32 s{d+3}, 0x20000")
```

```python
import sys
from asmlib import *
NAME = "concat_heads__softmax_full_mha__linear_attn_block__prompt"
MB = 1 << 20
QA, KV, PQ, KVP, OA, OB, WOT, WSZ = 0, 2*MB, 6*MB, 8*MB, 10*MB, 12*MB, 14*MB, 16*MB
LOG2E = 0x3fb8aa3b
QSCALE = 0x3eb8aa3b
EPS = 0x358637bd
ONES = 0x3f803f80

def mfma(d, x, y, c=None):
    cs = vr(d, 16) if c is None else c
    return f"v_mfma_f32_32x32x16_bf16 {vr(d,16)}, {vr(x,4)}, {vr(y,4)}, {cs}"

def k1(a, name):
    kernel_head(a, name)
    a("s_cmp_ge_u32 s2, 256\ns_cbranch_scc1 K1_end")
    a("s_load_dwordx4 s[4:7], s[0:1], 0\ns_load_dwordx4 s[8:11], s[0:1], 16\ns_load_dwordx4 s[12:15], s[0:1], 32\ns_load_dwordx2 s[16:17], s[0:1], 64")
    a("v_lshrrev_b32 v1, 6, v0\nv_and_b32 v2, 63, v0\nv_readfirstlane_b32 s20, v1")
    a.c("rb = (xcd>>1)*8 + (idx&7); cb = (xcd&1)*4 + (idx>>3); ks0 = ((idx&7) + 2*(idx>>3)) & 7")
    a("""s_and_b32 s40, s2, 7
    s_lshr_b32 s41, s2, 3
    s_and_b32 s42, s41, 7
    s_lshr_b32 s43, s41, 3
    s_lshr_b32 s21, s40, 1
    s_lshl_b32 s21, s21, 3
    s_add_u32 s21, s21, s42
    s_and_b32 s22, s40, 1
    s_lshl_b32 s22, s22, 2
    s_add_u32 s22, s22, s43
    s_lshl_b32 s23, s43, 1
    s_add_u32 s23, s23, s42
    s_and_b32 s23, s23, 7""")
    a("s_cmp_lt_u32 s20, 4\ns_cbranch_scc1 K1_compute")
    a("s_sub_u32 s18, s20, 4")
    a.c("x voffset: r = 8*lw + (i>>3); chunk = (i&7) ^ ((r>>1)&7)")
    a("""v_lshrrev_b32 v3, 3, v2
    s_lshl_b32 s40, s18, 3
    v_add_u32 v3, s40, v3
    v_lshrrev_b32 v4, 1, v3
    v_xor_b32 v4, v4, v2
    v_and_b32 v4, 7, v4
    v_lshlrev_b32 v4, 4, v4
    v_lshl_add_u32 v10, v3, 10, v4""")
    a.c("W voffsets for 3 patterns")
    a(f"s_mov_b32 s40, {(2**32+23)//24}\ns_lshl_b32 s41, s18, 4\ns_movk_i32 s42, 3072")
    for p in range(3):
        a(f"""v_add_u32 v3, {64*p}, v2
        v_mul_hi_u32 v4, v3, s40
        v_mul_u32_u24 v5, 24, v4
        v_sub_u32 v5, v3, v5
        v_add_u32 v4, s41, v4
        v_lshlrev_b32 v6, 1, v4
        v_and_b32 v6, 4, v6
        v_xor_b32 v6, v6, v5
        v_and_b32 v6, 7, v6
        v_lshrrev_b32 v5, 3, v5
        v_mul_u32_u24 v4, s42, v4
        v_lshl_add_u32 v4, v5, 10, v4
        v_lshl_add_u32 v{11+p}, v6, 4, v4""")
    a("s_lshl_b32 s44, s21, 16\ns_lshl_b32 s45, s22, 7")
    a("s_lshl_b32 s46, s18, 10\ns_mul_i32 s47, s18, 6144\ns_add_u32 s47, s47, 8192")
    a("s_mov_b32 s48, 0\ns_mov_b32 s49, 0")
    a("s_waitcnt lgkmcnt(0)")
    srd(a, 24, 4, 5, 2*MB); srd(a, 28, 6, 7, 0x180000); srd(a, 32, 16, 17, WSZ)
    a("K1_ltop:")
    a("s_cmp_lg_u32 s48, 8\ns_cbranch_scc1 K1_lnosw")
    a("s_mov_b32 s24, s10\ns_mov_b32 s25, s11\ns_mov_b32 s28, s12\ns_mov_b32 s29, s13")
    a("K1_lnosw:")
    a("""s_add_u32 m0, s49, s46
    s_lshl_b32 s50, s23, 7
    s_add_u32 s50, s50, s44
    buffer_load_dwordx4 v10, s[24:27], s50 offen lds
    s_add_u32 m0, m0, 4096
    s_add_u32 s50, s50, 32768
    buffer_load_dwordx4 v10, s[24:27], s50 offen lds
    s_add_u32 m0, s49, s47
    s_mul_i32 s51, s23, 196608
    s_add_u32 s51, s51, s45""")
    for t in range(6):
        a(f"buffer_load_dwordx4 v{11+t%3}, s[28:31], s51 offen lds")
        if t < 5:
            a("s_add_u32 m0, m0, 1024")
            a("s_add_u32 s51, s51, 24576" if t == 2 else "s_nop 0")
    a("""s_add_u32 s23, s23, 1
    s_and_b32 s23, s23, 7
    s_add_u32 s49, s49, 32768
    s_and_b32 s49, s49, 0x1ffff
    s_add_u32 s48, s48, 1
    s_cmp_lt_u32 s48, 4
    s_cbranch_scc1 K1_ltop
    s_cmp_lg_u32 s48, 4
    s_cbranch_scc1 K1_lno0
    s_waitcnt vmcnt(24)
    s_barrier
    K1_lno0:
    s_cmp_eq_u32 s48, 16
    s_cbranch_scc1 K1_ltail
    s_waitcnt vmcnt(16)
    s_barrier
    s_branch K1_ltop
    K1_ltail:""")
    a.c("wo fragments: kstep = id>>3, ct = 2*(id&7) + (lw&1), branch = lw>>1")
    a("""s_cmp_lt_u32 s18, 2
    s_cselect_b32 s36, s8, s14
    s_cselect_b32 s37, s9, s15
    s_mov_b32 s38, 0x80000
    s_mov_b32 s39, 0x20000
    s_lshr_b32 s40, s2, 3
    s_and_b32 s41, s2, 7
    s_lshl_b32 s41, s41, 1
    s_and_b32 s42, s18, 1
    s_add_u32 s41, s41, s42
    v_lshrrev_b32 v3, 5, v2
    v_and_b32 v4, 31, v2
    v_lshlrev_b32 v3, 12, v3
    v_lshl_add_u32 v3, v4, 1, v3
    s_lshl_b32 s43, s40, 14
    s_lshl_b32 s50, s41, 6
    s_add_u32 s43, s43, s50
    s_add_u32 s50, s43, 8192""")
    for j in range(8):
        a(f"buffer_load_ushort v{16+j}, v3, s[36:39], s{43 if j < 4 else 50} offen offset:{(j&3)*1024}")
    a("s_waitcnt vmcnt(24)\ns_barrier\ns_waitcnt vmcnt(16)\ns_barrier\ns_waitcnt vmcnt(8)\ns_barrier\ns_barrier")
    a("s_barrier")
    a("s_waitcnt vmcnt(0)")
    for j in range(4):
        a(f"v_lshl_or_b32 v{24+j}, v{17+2*j}, 16, v{16+2*j}")
    a(f"""s_lshr_b32 s42, s18, 1
    s_lshl_b32 s42, s42, 19
    s_lshl_b32 s41, s41, 15
    s_add_u32 s42, s42, s41
    s_lshl_b32 s40, s40, 10
    s_add_u32 s42, s42, s40
    s_add_u32 s42, s42, {WOT}
    v_lshlrev_b32 v3, 4, v2
    buffer_store_dwordx4 v[24:27], v3, s[32:35], s42 offen
    s_endpgm""")
    AC = [16, 32, 48]; XB = [64, 68]; WB = [72, 84]; AX = 96; AW = 100
    a("K1_compute:")
    a("s_and_b32 s18, s20, 1\ns_lshr_b32 s19, s20, 1")
    a.c("x read addrs: row = tt*32 + t; addr = row*128 + (((2s+h) ^ ((row>>1)&7))<<4)")
    a(f"""v_and_b32 v3, 31, v2
    v_lshrrev_b32 v4, 5, v2
    s_lshl_b32 s40, s18, 5
    v_add_u32 v5, s40, v3
    v_lshrrev_b32 v6, 1, v5
    v_and_b32 v6, 7, v6
    v_xor_b32 v6, v6, v4
    v_lshlrev_b32 v6, 4, v6
    v_lshl_add_u32 v{AX}, v5, 7, v6""")
    for s in range(1, 4):
        a(f"v_xor_b32 v{AX+s}, {32*s}, v{AX}")
    a.c("W read addr: g=l>>4, h=g>>1, colhalf=(g&1)^tt, r=(l&15)>>2, c=l&3")
    a(f"""v_bfe_u32 v5, v2, 2, 2
    v_lshl_add_u32 v6, v4, 3, v5
    v_mul_u32_u24 v6, 384, v6
    v_bfe_u32 v7, v2, 4, 1
    v_xor_b32 v7, s18, v7
    v_lshlrev_b32 v7, 1, v7
    v_bfe_u32 v8, v2, 1, 1
    v_or_b32 v7, v7, v8
    s_lshl_b32 s40, s19, 2
    v_or_b32 v7, s40, v7
    v_lshlrev_b32 v5, 1, v5
    v_and_b32 v5, 4, v5
    v_xor_b32 v7, v7, v5
    v_lshl_add_u32 v6, v7, 4, v6
    v_and_b32 v8, 1, v2
    v_lshl_add_u32 v6, v8, 3, v6
    v_add_u32 v{AW}, 8192, v6""")
    for i in range(48):
        a(f"v_mov_b32 v{16+i}, 0")
    a("s_mov_b32 s49, 0")
    a("s_waitcnt lgkmcnt(0)")
    srd(a, 32, 16, 17, WSZ)
    def reads(s, b):
        a(f"ds_read_b128 {vr(XB[b],4)}, v{AX+s}")
        for seg in range(3):
            for u in range(2):
                a(f"ds_read_b64_tr_b16 {vr(WB[b]+4*seg+2*u,2)}, v{AW} offset:{(16*s+4*u)*384+seg*128}")
    def mfmas(b, br):
        orient = [2, 2, 1] if br == 0 else [2, 1, 1]
        for seg in range(3):
            w = WB[b] + 4*seg
            a(mfma(AC[seg], w, XB[b]) if orient[seg] == 2 else mfma(AC[seg], XB[b], w))
    a("s_barrier")
    reads(0, 0)
    for br in range(2):
        a("s_mov_b32 s48, 8")
        a(f"K1_cloop{br}:")
        for s in range(3):
            reads(s+1, (s+1) & 1)
            a("s_waitcnt lgkmcnt(7)")
            mfmas(s & 1, br)
        a("""s_add_u32 s50, s49, 32768
        s_and_b32 s50, s50, 0x1ffff
        s_sub_u32 s51, s50, s49
        s_mov_b32 s49, s50""")
        for i in range(5):
            a(f"v_add_u32 v{AX+i}, s51, v{AX+i}")
        a("s_waitcnt lgkmcnt(0)\ns_barrier")
        reads(0, 0)
        mfmas(1, br)
        a(f"s_sub_u32 s48, s48, 1\ns_cmp_lg_u32 s48, 0\ns_cbranch_scc1 K1_cloop{br}")
        if br == 0:
            a.c("epilogue A.  first head = 4cb+2p+tt, second = 4cb+2p+1-tt, tile = 2rb+tt")
            a(f"""s_lshl_b32 s40, s22, 2
            s_lshl_b32 s41, s19, 1
            s_add_u32 s40, s40, s41
            s_add_u32 s41, s40, s18
            s_xor_b32 s42, s41, 1
            s_lshl_b32 s43, s21, 1
            s_add_u32 s43, s43, s18
            s_lshl_b32 s52, s41, 16
            s_lshl_b32 s53, s42, 16
            s_lshl_b32 s54, s43, 10
            s_add_u32 s52, s52, s54
            s_add_u32 s53, s53, s54
            s_lshl_b32 s55, s52, 1
            s_lshl_b32 s56, s53, 1
            s_add_u32 s55, s55, {KV}
            s_add_u32 s56, s56, {KV}
            s_mov_b32 s57, {QSCALE}
            v_lshlrev_b32 v101, 4, v2
            v_and_b32 v5, 0x33, v2
            v_and_b32 v6, 4, v2
            v_lshl_or_b32 v5, v6, 1, v5
            v_and_b32 v6, 8, v2
            v_lshrrev_b32 v6, 1, v6
            v_or_b32 v5, v5, v6
            v_lshlrev_b32 v102, 4, v5
            v_bfe_u32 v5, v2, 4, 1
            v_xor_b32 v5, s18, v5
            v_lshlrev_b32 v5, 17, v5
            v_lshl_add_u32 v5, v4, 9, v5
            v_and_b32 v6, 15, v2
            v_lshl_add_u32 v103, v6, 4, v5
            s_lshl_b32 s58, s40, 17
            s_lshl_b32 s59, s43, 11
            s_add_u32 s58, s58, s59
            s_add_u32 s58, s58, {KV+1024}""")
            for i in range(16):
                a(f"v_mul_f32 v{16+i}, s57, v{16+i}")
            for i in range(24):
                a(f"v_cvt_pk_bf16_f32 v{104+i}, v{16+2*i}, v{17+2*i}")
            a(f"""buffer_store_dwordx4 v[112:115], v102, s[32:35], s55 offen
            buffer_store_dwordx4 v[116:119], v102, s[32:35], s56 offen
            buffer_store_dwordx4 v[120:123], v103, s[32:35], s58 offen
            buffer_store_dwordx4 v[124:127], v103, s[32:35], s58 offen offset:256
            buffer_store_dwordx4 v[104:107], v101, s[32:35], s52 offen
            buffer_store_dwordx4 v[108:111], v101, s[32:35], s53 offen
            v_mov_b32 v5, {EPS}""")
            for i in range(32):
                a(f"v_mov_b32 v{16+i}, v5")
            for i in range(16):
                a(f"v_mov_b32 v{48+i}, 0")
            a("s_nop 1")
        else:
            a.c("epilogue B")
            a(f"s_mov_b32 s57, {LOG2E}\ns_mov_b32 s60, {EPS}\ns_waitcnt lgkmcnt(0)\ns_nop 7\ns_nop 3")
            def phi(base):
                for i in range(16):
                    a(f"v_mul_f32 v{104+i}, s57, v{base+i}")
                for i in range(16):
                    a(f"v_exp_f32_e64 v{104+i}, v{104+i} clamp")
                for i in range(16):
                    a(f"v_max_f32 v{base+i}, s60, v{base+i}")
                for i in range(16):
                    a(f"v_add_f32 v{base+i}, v{base+i}, v{104+i}")
            phi(32)
            for i in range(16):
                a(f"v_cvt_pk_bf16_f32 v{64+i}, v{32+2*i}, v{33+2*i}")
            a(f"v_mov_b32 v80, {ONES}\nv_mov_b32 v81, v80\nv_mov_b32 v82, v80\nv_mov_b32 v83, v80\ns_nop 1")
            a(mfma(32, 64, 72, "0")); a(mfma(48, 64, 80, "0"))
            a(mfma(32, 68, 76)); a(mfma(48, 68, 80))
            phi(16)
            for i in range(8):
                a(f"v_cvt_pk_bf16_f32 v{104+i}, v{16+2*i}, v{17+2*i}")
            a(f"""s_add_u32 s52, s52, {PQ}
            s_add_u32 s53, s53, {PQ}
            buffer_store_dwordx4 v[104:107], v101, s[32:35], s52 offen
            buffer_store_dwordx4 v[108:111], v101, s[32:35], s53 offen
            s_mov_b32 s62, 0xffff
            s_mov_b32 s63, 0xffff""")
            for i in range(8):
                a(f"v_cndmask_b32 v{32+i}, v{48+i}, v{32+i}, s[62:63]")
            for i in range(8, 16):
                a(f"v_cndmask_b32 v{32+i}, v{32+i}, v{48+i}, s[62:63]")
            a(f"""s_lshl_b32 s40, s20, 11
            s_add_u32 s40, s40, 131072
            s_xor_b32 s42, s40, 2048
            v_xor_b32 v5, 256, v101
            v_add_u32 v5, s42, v5
            v_add_u32 v6, s40, v101
            ds_write_b128 v5, v[40:43]
            ds_write_b128 v5, v[44:47] offset:1024
            s_waitcnt lgkmcnt(0)
            s_barrier
            ds_read_b128 v[40:43], v6
            ds_read_b128 v[44:47], v6 offset:1024
            s_lshl_b32 s41, s41, 16
            s_lshl_b32 s42, s21, 11
            s_add_u32 s41, s41, s42
            s_add_u32 s41, s41, {KVP}
            s_waitcnt lgkmcnt(0)""")
            for i in range(8):
                a(f"v_add_f32 v{32+i}, v{32+i}, v{40+i}")
            a("buffer_store_dwordx4 v[32:35], v101, s[32:35], s41 offen\nbuffer_store_dwordx4 v[36:39], v101, s[32:35], s41 offen offset:1024")
    a("K1_end:\ns_endpgm")

def k2(a, name):
    Q, K, V, S, C, O, IDX, AK = 4, [8, 12], [16, 24], [32, 48], 64, 80, 96, 97
    kernel_head(a, name)
    a("s_cmp_ge_u32 s2, 256\ns_cbranch_scc1 K2_end")
    a("s_load_dwordx2 s[16:17], s[0:1], 64")
    a("v_lshrrev_b32 v1, 6, v0\nv_and_b32 v2, 63, v0\nv_readfirstlane_b32 s20, v1")
    a(f"""s_and_b32 s21, s2, 7
    s_lshl_b32 s21, s21, 2
    s_bfe_u32 s40, s2, 0x20003
    s_add_u32 s21, s21, s40
    s_lshr_b32 s22, s2, 5
    s_lshl_b32 s22, s22, 3
    s_add_u32 s22, s22, s20
    v_lshlrev_b32 v{AK}, 4, v2
    s_lshl_b32 s40, s21, 17
    s_lshl_b32 s41, s20, 10
    s_add_u32 s40, s40, s41
    s_add_u32 s40, s40, {KV}
    s_lshl_b32 s42, s21, 16
    s_lshl_b32 s43, s22, 10
    s_add_u32 s43, s43, s42
    s_add_u32 s44, s43, {PQ}
    s_lshl_b32 s45, s20, 13
    s_add_u32 s45, s45, s42
    s_add_u32 s45, s45, {KVP}
    s_add_u32 s46, s45, 4096
    s_waitcnt lgkmcnt(0)""")
    srd(a, 32, 16, 17, WSZ)
    for i in range(8):
        a(f"buffer_load_dwordx4 {vr(100+4*i,4)}, v{AK}, s[32:35], s{45 if i < 4 else 46} offen offset:{(i&3)*1024}")
    a(f"buffer_load_dwordx4 v[132:135], v{AK}, s[32:35], s44 offen")
    a(f"buffer_load_dwordx4 {vr(Q,4)}, v{AK}, s[32:35], s43 offen")
    a("s_mov_b32 m0, s41")
    for i in range(16):
        a(f"s_nop 0\nbuffer_load_dwordx4 v{AK}, s[32:35], s40 offen lds")
        if i < 15:
            a("s_add_u32 m0, m0, 8192\ns_add_u32 s40, s40, 8192")
    a.c("B-mid")
    a("s_waitcnt vmcnt(18)")
    for pidx in range(1, 4):
        for i in range(8):
            a(f"v_add_f32 v{100+i}, v{100+i}, v{100+8*pidx+i}")
    a(f"""s_lshl_b32 s47, s20, 11
    s_add_u32 s47, s47, 135168
    v_add_u32 v3, s47, v{AK}
    v_add_u32 v98, 135168, v{AK}
    ds_write_b128 v3, v[100:103]
    ds_write_b128 v3, v[104:107] offset:1024
    s_waitcnt lgkmcnt(0)
    s_barrier""")
    for half in range(2):
        for w in range(4):
            for q in range(2):
                a(f"ds_read_b128 {vr(32+8*w+4*q,4)}, v98 offset:{(half*4+w)*2048+q*1024}")
        a("s_waitcnt lgkmcnt(0)")
        for w in range(4):
            for i in range(8):
                if half == 0 and w == 0:
                    a(f"v_mov_b32 v{100+i}, v{32+i}")
                else:
                    a(f"v_add_f32 v{100+i}, v{100+i}, v{32+8*w+i}")
    for i in range(4):
        a(f"v_cvt_pk_bf16_f32 v{108+i}, v{100+2*i}, v{101+2*i}")
    a("s_waitcnt vmcnt(17)\ns_nop 0")
    a(mfma(32, 108, 132, "0"))
    a(f"""s_lshl_b32 s48, s22, 15
    s_lshl_b32 s49, s21, 10
    s_add_u32 s48, s48, s49
    s_add_u32 s49, s48, {OB}
    s_add_u32 s48, s48, {OA}
    s_nop 7
    v_add_f32 v40, {EPS}, v40
    v_rcp_f32 v40, v40
    s_nop 0""")
    for i in range(8):
        a(f"v_mul_f32 v{32+i}, v{32+i}, v40")
    for i in range(4):
        a(f"v_cvt_pk_bf16_f32 v{108+i}, v{32+2*i}, v{33+2*i}")
    a(f"buffer_store_dwordx4 v[108:111], v{AK}, s[32:35], s49 offen")
    a.c("attention")
    a(f"v_mov_b32 v{IDX}, 0xdddddddd\ns_mov_b32 s62, 0xffff\ns_mov_b32 s63, 0xffff\ns_mov_b32 s61, 0")
    a(f"v_mov_b32 v3, {ONES}")
    for i in range(16):
        a(f"v_cndmask_b32 v{V[0]+i}, v3, 0, s[62:63]")
    for i in range(16):
        a(f"v_mov_b32 v{C+i}, 0")
    a("s_waitcnt vmcnt(0)\ns_barrier")
    a("K2_pass:")
    for i in range(16):
        a(f"v_mov_b32 v{O+i}, 0")
    for i in range(8, 16):
        a(f"v_mov_b32 v{S[1]+i}, 0")
    a(f"v_lshlrev_b32 v{AK}, 4, v2")
    a(f"ds_read_b128 {vr(K[0],4)}, v{AK}\nds_read_b128 {vr(K[1],4)}, v{AK} offset:2048")
    a(f"s_mov_b64 exec, s[62:63]\nds_read_b128 {vr(V[0],4)}, v{AK} offset:1024\nds_read_b128 {vr(V[0]+4,4)}, v{AK} offset:1280\ns_mov_b64 exec, -1")
    a("s_waitcnt lgkmcnt(3)")
    a(mfma(S[0], K[0], Q, vr(C, 16)))
    a("s_mov_b32 s60, 32\ns_nop 7\ns_nop 3")
    a(".p2align 6\nK2_loop:")
    def ex(b, lo, hi):
        for i in range(lo, hi):
            a(f"v_exp_f32 v{S[b]+i}, v{S[b]+i}")
    def pv(b, f):
        a(f"v_smfmac_f32_32x32x32_bf16 {vr(O,16)}, {vr(V[b]+4*f,4)}, {vr(S[b]+8*f,8)}, v{IDX}")
    for b in range(2):
        n = b ^ 1
        a(f"ds_read_b128 {vr(K[b],4)}, v{AK} offset:{(b+2)*2048}")
        ex(b, 0, 2)
        pv(n, 1)
        ex(b, 2, 6)
        a("s_waitcnt lgkmcnt(3)")
        a(mfma(S[n], K[n], Q, vr(C, 16)))
        a(f"s_mov_b64 exec, s[62:63]\nds_read_b128 {vr(V[n],4)}, v{AK} offset:{(b+1)*2048+1024}\nds_read_b128 {vr(V[n]+4,4)}, v{AK} offset:{(b+1)*2048+1280}\ns_mov_b64 exec, -1")
        ex(b, 6, 11)
        a("s_waitcnt lgkmcnt(3)")
        pv(b, 0)
        if b == 1:
            a(f"v_add_u32 v{AK}, 4096, v{AK}\ns_sub_u32 s60, s60, 1\ns_cmp_lg_u32 s60, 0")
        ex(b, 11, 16)
    a("s_cbranch_scc1 K2_loop")
    a("s_nop 1")
    pv(1, 1)
    a("s_waitcnt lgkmcnt(0)\ns_nop 7\ns_nop 3")
    a(f"""s_cmp_lg_u32 s61, 0
    s_cbranch_scc1 K2_fin
    v_cmp_lt_f32 vcc, 0x21800000, v{O+8}
    s_mov_b64 s[50:51], vcc
    v_cmp_gt_f32 vcc, 0x5d800000, v{O+8}
    s_and_b64 s[50:51], s[50:51], vcc
    s_cmp_eq_u64 s[50:51], -1
    s_cbranch_scc1 K2_fin""")
    a.c("row sum left the safe range: redo the pass with the true row max")
    a(f"s_mov_b32 s61, 1\ns_mov_b32 s60, 64\nv_lshlrev_b32 v{AK}, 4, v2\nv_mov_b32 v3, 0xff800000")
    a("K2_mx:")
    a(f"ds_read_b128 {vr(K[0],4)}, v{AK}\nv_add_u32 v{AK}, 2048, v{AK}\ns_waitcnt lgkmcnt(0)")
    a(mfma(S[0], K[0], Q, "0"))
    a("s_nop 7\ns_nop 7")
    for i in range(8):
        a(f"v_max3_f32 v3, v3, v{S[0]+2*i}, v{S[0]+2*i+1}")
    a("s_sub_u32 s60, s60, 1\ns_cmp_lg_u32 s60, 0\ns_cbranch_scc1 K2_mx")
    a("v_mov_b32 v98, v3\ns_nop 1\nv_permlane32_swap_b32 v3, v98\ns_nop 1\nv_max_f32 v3, v3, v98")
    for i in range(16):
        a(f"v_sub_f32 v{C+i}, 0, v3")
    a("s_branch K2_pass")
    a("K2_fin:")
    a(f"v_rcp_f32 v3, v{O+8}\nv_lshlrev_b32 v{AK}, 4, v2")
    for i in range(8):
        a(f"v_mul_f32 v{O+i}, v{O+i}, v3")
    for i in range(4):
        a(f"v_cvt_pk_bf16_f32 v{108+i}, v{O+2*i}, v{O+2*i+1}")
    a(f"buffer_store_dwordx4 v[108:111], v{AK}, s[32:35], s48 offen")
    a("K2_end:\ns_endpgm")

def k3(a, name):
    WO = [64, 128]; ACC = 16; OF = 32
    kernel_head(a, name)
    a("s_cmp_ge_u32 s2, 256\ns_cbranch_scc1 K3_end")
    a("s_load_dwordx2 s[16:17], s[0:1], 64\ns_load_dwordx2 s[14:15], s[0:1], 48")
    a("v_lshrrev_b32 v1, 6, v0\nv_and_b32 v2, 63, v0\nv_readfirstlane_b32 s20, v1")
    a.c("tile = (id&7)*8 + ((id>>3)&7); colblock = id>>6; ct = w&3; kh = w>>2")
    a(f"""s_and_b32 s21, s2, 7
    s_lshl_b32 s21, s21, 3
    s_bfe_u32 s40, s2, 0x30003
    s_add_u32 s21, s21, s40
    s_lshr_b32 s22, s2, 6
    s_and_b32 s18, s20, 3
    s_lshr_b32 s19, s20, 2
    v_lshlrev_b32 v3, 4, v2
    s_lshl_b32 s40, s19, 8
    v_xor_b32 v4, s40, v3
    s_lshl_b32 s41, s22, 2
    s_add_u32 s41, s41, s18
    s_lshl_b32 s41, s41, 15
    s_lshl_b32 s42, s19, 14
    s_add_u32 s41, s41, s42
    s_add_u32 s41, s41, {WOT}
    s_lshl_b32 s43, s21, 15
    s_lshl_b32 s44, s20, 12
    s_add_u32 s43, s43, s44
    s_add_u32 s43, s43, {OA}
    s_waitcnt lgkmcnt(0)""")
    srd(a, 32, 16, 17, WSZ); srd(a, 28, 14, 15, 4*MB)
    for br in range(2):
        a(f"s_add_u32 m0, s44, {br*32768}")
        for i in range(4):
            a(f"s_nop 0\nbuffer_load_dwordx4 v3, s[32:35], s43 offen offset:{i*1024} lds")
        if br == 0: a(f"s_add_u32 s43, s43, {OB-OA}")
        for i in range(16):
            if i % 4 == 0 and i > 0: a("s_add_u32 s41, s41, 4096")
            a(f"buffer_load_dwordx4 {vr(WO[br]+4*i,4)}, v4, s[32:35], s41 offen offset:{(i&3)*1024}")
        if br == 0: a(f"s_add_u32 s41, s41, {0x80000-3*4096}")
    a(f"""s_lshl_b32 s45, s19, 14
    v_add_u32 v5, s45, v3
    s_lshl_b32 s46, s20, 11
    s_add_u32 s46, s46, 65536
    s_xor_b32 s47, s46, 8192
    v_add_u32 v6, s46, v3
    v_add_u32 v7, s47, v3
    v_and_b32 v8, 31, v2
    v_lshlrev_b32 v8, 11, v8
    v_lshrrev_b32 v9, 5, v2
    v_lshl_add_u32 v8, v9, 4, v8
    s_lshl_b32 s48, s21, 16
    s_lshl_b32 s49, s22, 8
    s_add_u32 s48, s48, s49
    s_lshl_b32 s49, s18, 6
    s_add_u32 s48, s48, s49
    s_lshl_b32 s49, s19, 5
    s_add_u32 s48, s48, s49""")
    for br in range(2):
        a(f"s_waitcnt vmcnt({36 if br == 0 else 17})\ns_barrier")
        for i in range(8):
            a(f"ds_read_b128 {vr(OF+4*i,4)}, v5 offset:{br*32768+i*1024}")
        a(f"s_waitcnt vmcnt({20 if br == 0 else 1})")
        for i in range(16):
            a(f"s_waitcnt lgkmcnt({7 if i < 9 else 15-i})")
            a(mfma(ACC, WO[br]+4*i, OF+4*(i&7), "0" if i == 0 else None))
            if i < 8:
                a(f"ds_read_b128 {vr(OF+4*i,4)}, v5 offset:{br*32768+(i+8)*1024}")
        a("s_nop 7\ns_nop 3")
        a(f"ds_write_b128 v7, v[24:27] offset:{br*16384}\nds_write_b128 v7, v[28:31] offset:{br*16384+1024}\ns_waitcnt lgkmcnt(0)\ns_barrier")
        a(f"ds_read_b128 v[24:27], v6 offset:{br*16384}\nds_read_b128 v[28:31], v6 offset:{br*16384+1024}\ns_waitcnt lgkmcnt(0)")
        for i in range(8):
            a(f"v_add_f32 v{16+i}, v{16+i}, v{24+i}")
        for i in range(4):
            a(f"v_cvt_pk_bf16_f32 v{12+i}, v{16+2*i}, v{17+2*i}")
        a("s_nop 1\nv_permlane32_swap_b32 v12, v14\nv_permlane32_swap_b32 v13, v15")
        a(f"buffer_store_dwordx4 v[12:15], v8, s[28:31], s48 offen offset:{br*1024}")
        a("s_nop 1")
    a("K3_end:\ns_endpgm")

def main(path):
    a = Asm()
    a("; @launch kernel=qkv_kernel grid=(256,1,1) block=(512,1,1) lds=139264")
    a("; @launch kernel=attn_kernel grid=(256,1,1) block=(512,1,1) lds=151552")
    a("; @launch kernel=proj_kernel grid=(256,1,1) block=(512,1,1) lds=98304")
    a('.amdgcn_target "amdgcn-amd-amdhsa--gfx950"\n.text')
    k1(a, "qkv_kernel"); k2(a, "attn_kernel"); k3(a, "proj_kernel")
    t = a.text() + '.section .rodata,"a"\n' + kernel_desc("qkv_kernel", 128) + kernel_desc("attn_kernel", 136) + kernel_desc("proj_kernel", 192)
    open(path, "w").write(t)
if __name__ == "__main__":
    main(sys.argv[1] if len(sys.argv) > 1 else f"cdna_kernels/{NAME}.s")
```

```python
class Asm:
    def __init__(self):
        self.L = []
        self.uid = 0
    def __call__(self, s):
        for line in s.split("\n"):
            line = line.strip()
            if line:
                self.L.append(line if line.endswith(":") or line.startswith(".") or line.startswith(";") else "    " + line)
    def c(self, s):
        self.L.append("    ; " + s)
    def label(self, base):
        self.uid += 1
        return f"L{base}_{self.uid}"
    def text(self):
        return "\n".join(self.L) + "\n"

def vr(b, n):
    return f"v[{b}:{b+n-1}]" if n > 1 else f"v{b}"
def sr(b, n):
    return f"s[{b}:{b+n-1}]" if n > 1 else f"s{b}"

def kernel_head(a, name):
    a(f".globl {name}\n.p2align 8\n.type {name},@function\n{name}:")

def kernel_desc(name, vgpr, sgpr=96):
    acc = (vgpr + 3) // 4 * 4
    return f""".p2align 6
.amdhsa_kernel {name}
  .amdhsa_next_free_vgpr {vgpr}
  .amdhsa_next_free_sgpr {sgpr}
  .amdhsa_accum_offset {acc}
  .amdhsa_group_segment_fixed_size 0
  .amdhsa_kernarg_size 72
  .amdhsa_user_sgpr_count 2
  .amdhsa_user_sgpr_kernarg_segment_ptr 1
  .amdhsa_system_sgpr_workgroup_id_x 1
.end_amdhsa_kernel
"""

def srd(a, d, lo, hi, nbytes):
    a(f"s_mov_b32 s{d}, s{lo}\ns_mov_b32 s{d+1}, s{hi}\ns_mov_b32 s{d+2}, {nbytes:#x}\ns_mov_b32 s{d+3}, 0x20000")

PROF = [False]
PROF_OFF = 32 << 20
def stamp0(a):
    if PROF[0]:
        a("s_memrealtime s[72:73]\ns_memtime s[74:75]")
def stamp(a, i):
    if PROF[0]:
        a(f"s_memtime s[{74+2*i}:{75+2*i}]")
def stamp_dump(a, kidx, wsl, wsh, wave, nst):
    if not PROF[0]:
        return
    a("s_memrealtime s[90:91]\ns_waitcnt lgkmcnt(0) vmcnt(0)")
    a(f"s_add_u32 s92, s{wsl}, {PROF_OFF + kidx*(1<<20)}\ns_addc_u32 s93, s{wsh}, 0\ns_mov_b32 s94, 0x100000\ns_mov_b32 s95, 0x20000")
    a(f"s_lshl_b32 s70, s2, 3\ns_add_u32 s70, s70, s{wave}\ns_lshl_b32 s70, s70, 6")
    a("s_mov_b64 exec, 1")
    a("v_mov_b32 v0, s72\nv_mov_b32 v1, s90")
    for i in range(1, 9):
        if i < nst:
            a(f"s_sub_u32 s71, s{74+2*i}, s74\nv_mov_b32 v{1+i}, s71")
        else:
            a(f"v_mov_b32 v{1+i}, 0")
    a("v_mov_b32 v10, 0\nv_mov_b32 v11, 0\nv_mov_b32 v12, s70")
    a("buffer_store_dwordx4 v[0:3], v12, s[92:95], 0 offen\nbuffer_store_dwordx4 v[4:7], v12, s[92:95], 0 offen offset:16\nbuffer_store_dwordx4 v[8:11], v12, s[92:95], 0 offen offset:32")
```

```python
import sys
from asmlib import *
NAME = "concat_heads__softmax_full_mha__linear_attn_block__prompt"
MB = 1 << 20
QA, KV, PQ, KVP, OA, OB, WOT, FL = 0, 2*MB, 6*MB, 8*MB, 10*MB, 12*MB, 14*MB, 15*MB
FPH = 256*1024
EPOCH = FL + 4*FPH - 128 + 64
WSZ = 16*MB
LOG2E, QSCALE, EPS, ONES = 0x3fb8aa3b, 0x3eb8aa3b, 0x358637bd, 0x3f803f80
RB = 32768
L_ONES = 135168
L_SCR = 147456
L_Q = 155648
SPIN = 1 << 16
P = dict(ROT=8, D=3, F1AT=3, X1=10, F2POLL=17, BMID=26, F3POLL=44)

def mfma(d, x, y, c=None):
    cs = vr(d, 16) if c is None else c
    return f"v_mfma_f32_32x32x16_bf16 {vr(d,16)}, {vr(x,4)}, {vr(y,4)}, {cs}"

V_LANE, V_L16, V_T, V_FA = 2, 1, 3, 4
S_W = 20
WS = "s[32:35]"

def gen(a):
    tail = []
    def poll(name, vaddr, vval, waitn, reload_T=False):
        a(f"s_waitcnt vmcnt({waitn})")
        if reload_T:
            a(f"v_cmp_eq_u32 s[66:67], 0, v{V_T}\nv_cmp_ne_u32 vcc, v{V_T}, v{vval}\ns_or_b64 vcc, vcc, s[66:67]\ns_cbranch_scc1 R_{name}")
        else:
            a(f"v_cmp_ne_u32 vcc, v{V_T}, v{vval}\ns_cbranch_vccnz R_{name}")
        a(f"C_{name}:")
        t = f"R_{name}:\ns_mov_b32 s65, {SPIN}\nRL_{name}:\n"
        if reload_T:
            t += f"v_mov_b32 v{vval}, 0\nbuffer_load_dword v{V_T}, v{vval}, s[36:39], 0 offen sc1\ns_waitcnt vmcnt(0)\n"
        t += f"buffer_load_dword v{vval}, v{vaddr}, {WS}, 0 offen sc1\ns_waitcnt vmcnt(0)\n"
        t += f"s_sub_u32 s65, s65, 1\ns_cbranch_scc1 C_{name}\n"
        if reload_T:
            t += f"v_cmp_eq_u32 s[66:67], 0, v{V_T}\nv_cmp_ne_u32 vcc, v{V_T}, v{vval}\ns_or_b64 vcc, vcc, s[66:67]\ns_cbranch_scc1 RL_{name}\n"
        else:
            t += f"v_cmp_ne_u32 vcc, v{V_T}, v{vval}\ns_cbranch_vccnz RL_{name}\n"
        t += f"s_branch C_{name}"
        tail.append(t)
    def flag_store(phase):
        a(f"s_add_u32 s66, s64, {FL + phase*FPH}\ns_mov_b64 exec, 1\nv_mov_b32 v{V_FA}, 0\nbuffer_store_dword v{V_T}, v{V_FA}, {WS}, s66 offen sc1\ns_mov_b64 exec, -1")

    kernel_head(a, NAME + "_kernel")
    a("s_cmp_ge_u32 s2, 256\ns_cbranch_scc1 K_end")
    stamp0(a)
    a("s_load_dwordx4 s[4:7], s[0:1], 0\ns_load_dwordx4 s[8:11], s[0:1], 16\ns_load_dwordx4 s[12:15], s[0:1], 32\ns_load_dwordx4 s[56:59], s[0:1], 48\ns_load_dwordx2 s[16:17], s[0:1], 64")
    a(f"v_lshrrev_b32 v1, 6, v0\nv_and_b32 v{V_LANE}, 63, v0\nv_readfirstlane_b32 s{S_W}, v1\nv_lshlrev_b32 v{V_L16}, 4, v{V_LANE}")
    a.c("gemm tile: rb = (xcd>>1)*8 + (idx&7); cb = (xcd&1)*4 + (idx>>3); first K stage s23")
    a("""s_and_b32 s40, s2, 7
    s_lshr_b32 s41, s2, 3
    s_and_b32 s42, s41, 7
    s_lshr_b32 s43, s41, 3
    s_lshr_b32 s21, s40, 1
    s_lshl_b32 s21, s21, 3
    s_add_u32 s21, s21, s42
    s_and_b32 s22, s40, 1
    s_lshl_b32 s22, s22, 2
    s_add_u32 s22, s22, s43""")
    R = P["ROT"]
    if R == 0:
        a("s_mov_b32 s23, 0")
    elif R == 8:
        a("s_lshl_b32 s23, s43, 1\ns_add_u32 s23, s23, s42\ns_and_b32 s23, s23, 7")
    else:
        a(f"s_add_u32 s23, s43, s42\ns_and_b32 s23, s23, {R-1}\ns_lshl_b32 s23, s23, {1 if R == 4 else 2}")
    a.c("attention unit: head s60, first q tile s61+wave; s64 = flag offset of this wave")
    a(f"""s_lshl_b32 s60, s40, 2
    s_and_b32 s44, s41, 3
    s_add_u32 s60, s60, s44
    s_lshr_b32 s61, s2, 5
    s_lshl_b32 s61, s61, 3
    s_lshl_b32 s64, s2, 3
    s_add_u32 s64, s64, s{S_W}
    s_lshl_b32 s64, s64, 7""")
    a(f"s_cmp_lt_u32 s{S_W}, 4\ns_cbranch_scc1 K_compute")
    a(f"s_sub_u32 s18, s{S_W}, 4")
    a(f"""v_lshrrev_b32 v5, 3, v{V_LANE}
    s_lshl_b32 s40, s18, 3
    v_add_u32 v5, s40, v5
    v_lshrrev_b32 v6, 1, v5
    v_xor_b32 v6, v6, v{V_LANE}
    v_and_b32 v6, 7, v6
    v_lshlrev_b32 v6, 4, v6
    v_lshl_add_u32 v10, v5, 10, v6""")
    a(f"s_mov_b32 s40, {(2**32+23)//24}\ns_lshl_b32 s41, s18, 4\ns_movk_i32 s42, 3072")
    for p in range(3):
        a(f"""v_add_u32 v5, {64*p}, v{V_LANE}
        v_mul_hi_u32 v6, v5, s40
        v_mul_u32_u24 v7, 24, v6
        v_sub_u32 v7, v5, v7
        v_add_u32 v6, s41, v6
        v_lshlrev_b32 v8, 1, v6
        v_and_b32 v8, 4, v8
        v_xor_b32 v8, v8, v7
        v_and_b32 v8, 7, v8
        v_lshrrev_b32 v7, 3, v7
        v_mul_u32_u24 v6, s42, v6
        v_lshl_add_u32 v6, v7, 10, v6
        v_lshl_add_u32 v{11+p}, v8, 4, v6""")
    a("s_lshl_b32 s44, s21, 16\ns_lshl_b32 s45, s22, 7")
    a(f"s_lshl_b32 s46, s18, 10\ns_add_u32 s46, s46, {RB}\ns_mul_i32 s47, s18, 6144\ns_add_u32 s47, s47, {RB+8192}")
    a("s_mov_b32 s48, 0\ns_mov_b32 s49, 0")
    a("s_waitcnt lgkmcnt(0)")
    srd(a, 24, 4, 5, 2*MB); srd(a, 28, 6, 7, 0x180000); srd(a, 32, 16, 17, WSZ)
    D = P["D"]
    a("K_ltop:")
    a("s_cmp_lg_u32 s48, 8\ns_cbranch_scc1 K_lnosw")
    a("s_mov_b32 s24, s10\ns_mov_b32 s25, s11\ns_mov_b32 s28, s12\ns_mov_b32 s29, s13")
    a("K_lnosw:")
    a("""s_add_u32 m0, s49, s46
    s_lshl_b32 s50, s23, 7
    s_add_u32 s50, s50, s44
    buffer_load_dwordx4 v10, s[24:27], s50 offen lds
    s_add_u32 m0, m0, 4096
    s_add_u32 s50, s50, 32768
    buffer_load_dwordx4 v10, s[24:27], s50 offen lds
    s_add_u32 m0, s49, s47
    s_mul_i32 s51, s23, 196608
    s_add_u32 s51, s51, s45""")
    for t in range(6):
        a(f"buffer_load_dwordx4 v{11+t%3}, s[28:31], s51 offen lds")
        if t < 5:
            a("s_add_u32 m0, m0, 1024")
            a("s_add_u32 s51, s51, 24576" if t == 2 else "s_nop 0")
    a("""s_add_u32 s23, s23, 1
    s_and_b32 s23, s23, 7
    s_add_u32 s49, s49, 32768
    s_and_b32 s49, s49, 0x1ffff
    s_add_u32 s48, s48, 1
    s_cmp_lt_u32 s48, 2
    s_cbranch_scc1 K_ltop""")
    if D == 3:
        a("""s_cmp_lg_u32 s48, 2
        s_cbranch_scc1 K_lno0
        s_waitcnt vmcnt(8)
        s_barrier
        K_lno0:
        s_cmp_lt_u32 s48, 4
        s_cbranch_scc1 K_ltop""")
    a(f"""s_cmp_eq_u32 s48, 16
    s_cbranch_scc1 K_ltail
    s_waitcnt vmcnt({8*(D-1)})
    s_barrier
    s_branch K_ltop
    K_ltail:""")
    a.c("wo fragments: kstep = id>>3, ct = 2*(id&7) + (lw&1), branch = lw>>1")
    a(f"""s_cmp_lt_u32 s18, 2
    s_cselect_b32 s36, s8, s14
    s_cselect_b32 s37, s9, s15
    s_mov_b32 s38, 0x80000
    s_mov_b32 s39, 0x20000
    s_lshr_b32 s40, s2, 3
    s_and_b32 s41, s2, 7
    s_lshl_b32 s41, s41, 1
    s_and_b32 s42, s18, 1
    s_add_u32 s41, s41, s42
    v_lshrrev_b32 v5, 5, v{V_LANE}
    v_and_b32 v6, 31, v{V_LANE}
    v_lshlrev_b32 v5, 12, v5
    v_lshl_add_u32 v5, v6, 1, v5
    s_lshl_b32 s43, s40, 14
    s_lshl_b32 s50, s41, 6
    s_add_u32 s43, s43, s50
    s_add_u32 s50, s43, 8192""")
    for j in range(8):
        a(f"buffer_load_ushort v{16+j}, v5, s[36:39], s{43 if j < 4 else 50} offen offset:{(j&3)*1024}")
    a.c("F1 flag addresses: lane -> producer wave of key tile `lane` of my head: wg(rb=lane>>1, cb=head>>2), wave = (lane&1) + (head&2)")
    a(f"""v_lshrrev_b32 v6, 1, v{V_LANE}
    v_and_b32 v7, 7, v6
    v_lshrrev_b32 v6, 3, v6
    v_lshlrev_b32 v6, 1, v6
    v_lshl_add_u32 v6, v7, 3, v6
    s_lshr_b32 s43, s60, 2
    s_and_b32 s50, s43, 3
    s_lshl_b32 s50, s50, 6
    s_lshr_b32 s43, s43, 2
    s_add_u32 s43, s43, s50
    s_lshl_b32 s43, s43, 3
    s_and_b32 s50, s60, 2
    s_add_u32 s43, s43, s50
    v_and_b32 v7, 1, v{V_LANE}
    v_lshl_add_u32 v6, v6, 3, v7
    v_add_u32 v6, s43, v6
    v_lshlrev_b32 v6, 7, v6
    v_add_u32 v14, {FL}, v6""")
    for k in range(D, 0, -1):
        a(f"s_waitcnt vmcnt({8*k})\ns_barrier")
    srd(a, 36, 58, 59, 256)
    a(f"v_mov_b32 v15, 0\nbuffer_load_dword v{V_T}, v15, s[36:39], 0 offen sc1\nbuffer_load_dword v15, v14, {WS}, 0 offen sc1")
    a("s_barrier")
    stamp(a, 1)
    a("s_waitcnt vmcnt(2)")
    for j in range(4):
        a(f"v_lshl_or_b32 v{24+j}, v{17+2*j}, 16, v{16+2*j}")
    a(f"""s_lshr_b32 s42, s18, 1
    s_lshl_b32 s42, s42, 19
    s_lshl_b32 s41, s41, 15
    s_add_u32 s42, s42, s41
    s_lshl_b32 s40, s40, 10
    s_add_u32 s42, s42, s40
    s_add_u32 s42, s42, {WOT}""")
    a.c("constant rows for the row-sum half of the V operand: 16 B of ones, 16 B of zeros, repeated")
    a(f"""v_and_b32 v6, 1, v{V_LANE}
    v_cmp_eq_u32 vcc, 0, v6
    v_mov_b32 v6, {ONES}
    s_mul_i32 s43, s18, 3072
    v_cndmask_b32 v28, 0, v6, vcc
    s_add_u32 s43, s43, {L_ONES}
    v_mov_b32 v29, v28
    v_mov_b32 v30, v28
    v_mov_b32 v31, v28
    v_add_u32 v6, s43, v{V_L16}
    ds_write_b128 v6, v[28:31]
    ds_write_b128 v6, v[28:31] offset:1024
    ds_write_b128 v6, v[28:31] offset:2048""")
    poll("f1", 14, 15, 0, reload_T=True)
    stamp(a, 2)
    a(f"""s_lshl_b32 s43, s60, 17
    s_lshl_b32 s50, s18, 10
    s_add_u32 s43, s43, s50
    s_add_u32 s43, s43, {KV}
    s_mov_b32 m0, s50
    s_lshl_b32 s51, s60, 16
    s_lshl_b32 s52, s61, 10
    s_add_u32 s51, s51, s52
    s_lshl_b32 s52, s18, 11
    s_add_u32 s51, s51, s52""")
    for i in range(8):
        a(f"buffer_load_dwordx4 v{V_L16}, {WS}, s43 offen sc1 lds")
        if i == 1:
            a(f"s_add_u32 m0, s52, {L_Q}\ns_nop 0\nbuffer_load_dwordx4 v{V_L16}, {WS}, s51 offen sc1 lds\nbuffer_load_dwordx4 v{V_L16}, {WS}, s51 offen offset:1024 sc1 lds\ns_add_u32 m0, s50, 4096")
        if i < 7:
            a("s_add_u32 m0, m0, 4096\ns_add_u32 s43, s43, 4096")
    a(f"buffer_store_dwordx4 v[24:27], v{V_L16}, {WS}, s42 offen sc1")
    a("s_waitcnt vmcnt(1) lgkmcnt(0)\ns_barrier")
    a("s_branch K_att")
    AC = [16, 32, 48]; XB = [64, 68]; WB = [72, 84]; AX = 96; AW = 100
    a("K_compute:")
    a(f"s_and_b32 s18, s{S_W}, 1\ns_lshr_b32 s19, s{S_W}, 1")
    a(f"""v_and_b32 v5, 31, v{V_LANE}
    v_lshrrev_b32 v9, 5, v{V_LANE}
    s_lshl_b32 s40, s18, 5
    v_add_u32 v5, s40, v5
    v_lshrrev_b32 v6, 1, v5
    v_and_b32 v6, 7, v6
    v_xor_b32 v6, v6, v9
    v_lshlrev_b32 v6, 4, v6
    v_lshl_add_u32 v{AX}, v5, 7, v6
    v_add_u32 v{AX}, {RB}, v{AX}""")
    for s in range(1, 4):
        a(f"v_xor_b32 v{AX+s}, {32*s}, v{AX}")
    a(f"""v_bfe_u32 v5, v{V_LANE}, 2, 2
    v_lshl_add_u32 v6, v9, 3, v5
    v_mul_u32_u24 v6, 384, v6
    v_bfe_u32 v7, v{V_LANE}, 4, 1
    v_xor_b32 v7, s18, v7
    v_lshlrev_b32 v7, 1, v7
    v_bfe_u32 v8, v{V_LANE}, 1, 1
    v_or_b32 v7, v7, v8
    s_lshl_b32 s40, s19, 2
    v_or_b32 v7, s40, v7
    v_lshlrev_b32 v5, 1, v5
    v_and_b32 v5, 4, v5
    v_xor_b32 v7, v7, v5
    v_lshl_add_u32 v6, v7, 4, v6
    v_and_b32 v8, 1, v{V_LANE}
    v_lshl_add_u32 v6, v8, 3, v6
    v_add_u32 v{AW}, {RB+8192}, v6""")
    for i in range(48):
        a(f"v_mov_b32 v{16+i}, 0")
    a.c("store addressing: first head s41 = 4cb+2p+tt, second = s41^1, tile = 2rb+tt")
    a(f"""s_lshl_b32 s40, s22, 2
    s_lshl_b32 s41, s19, 1
    s_add_u32 s40, s40, s41
    s_add_u32 s41, s40, s18
    s_xor_b32 s42, s41, 1
    s_lshl_b32 s43, s21, 1
    s_add_u32 s43, s43, s18
    s_lshl_b32 s52, s41, 16
    s_lshl_b32 s53, s42, 16
    s_lshl_b32 s54, s43, 10
    s_add_u32 s52, s52, s54
    s_add_u32 s53, s53, s54
    s_lshl_b32 s55, s52, 1
    s_lshl_b32 s68, s53, 1
    s_add_u32 s55, s55, {KV}
    s_add_u32 s68, s68, {KV}
    v_and_b32 v5, 0x33, v{V_LANE}
    v_and_b32 v6, 4, v{V_LANE}
    v_lshl_or_b32 v5, v6, 1, v5
    v_and_b32 v6, 8, v{V_LANE}
    v_lshrrev_b32 v6, 1, v6
    v_or_b32 v5, v5, v6
    v_lshlrev_b32 v102, 4, v5
    v_bfe_u32 v5, v{V_LANE}, 4, 1
    v_xor_b32 v5, s18, v5
    v_lshlrev_b32 v5, 17, v5
    v_lshl_add_u32 v5, v9, 9, v5
    v_and_b32 v6, 15, v{V_LANE}
    v_lshl_add_u32 v103, v6, 4, v5
    s_lshl_b32 s69, s40, 17
    s_lshl_b32 s54, s43, 11
    s_add_u32 s69, s69, s54
    s_add_u32 s69, s69, {KV+1024}
    s_mov_b32 s49, 0
    v_mov_b32 v101, 0""")
    a("s_waitcnt lgkmcnt(0)")
    srd(a, 32, 16, 17, WSZ); srd(a, 36, 58, 59, 256)
    a.c("workgroup 0, wave 0: next launch tag from the epoch word")
    a(f"""s_cmp_lg_u32 s64, 0
    s_cbranch_scc1 K_noepoch
    s_mov_b64 exec, 1
    s_mov_b32 s66, {EPOCH}
    buffer_load_dword v5, v101, {WS}, s66 offen sc1
    s_mov_b32 s67, 0x9e3779b1
    s_waitcnt vmcnt(0)
    v_mul_lo_u32 v5, v5, s67
    v_add_u32 v5, 0x7f4a7c15, v5
    v_max_u32 v5, 1, v5
    buffer_store_dword v5, v101, s[36:39], 0 offen sc1
    buffer_store_dword v5, v101, {WS}, s66 offen sc1
    s_mov_b64 exec, -1
    K_noepoch:""")
    def reads(s, b):
        a(f"ds_read_b128 {vr(XB[b],4)}, v{AX+s}")
        for seg in range(3):
            for u in range(2):
                a(f"ds_read_b64_tr_b16 {vr(WB[b]+4*seg+2*u,2)}, v{AW} offset:{(16*s+4*u)*384+seg*128}")
    def mfmas(b, br):
        orient = [2, 2, 1] if br == 0 else [2, 1, 1]
        for seg in range(3):
            w = WB[b] + 4*seg
            a(mfma(AC[seg], w, XB[b]) if orient[seg] == 2 else mfma(AC[seg], XB[b], w))
    a("s_barrier")
    stamp(a, 1)
    reads(0, 0)
    for br in range(2):
        a("s_mov_b32 s48, 8")
        a(f"K_cloop{br}:")
        for s in range(3):
            reads(s+1, (s+1) & 1)
            a("s_waitcnt lgkmcnt(7)")
            mfmas(s & 1, br)
            if s == 0:
                if br == 0:
                    a(f"s_cmp_lg_u32 s48, 2\ns_cbranch_scc1 K_not\nbuffer_load_dword v{V_T}, v101, s[36:39], 0 offen sc1\nK_not:")
                else:
                    a(f"s_cmp_lg_u32 s48, {P['F1AT']}\ns_cbranch_scc1 K_nof1\ns_waitcnt vmcnt(0)")
                    stamp(a, 4)
                    flag_store(0)
                    a("K_nof1:")
        a("""s_add_u32 s50, s49, 32768
        s_and_b32 s50, s50, 0x1ffff
        s_sub_u32 s51, s50, s49
        s_mov_b32 s49, s50""")
        for i in range(5):
            a(f"v_add_u32 v{AX+i}, s51, v{AX+i}")
        a("s_waitcnt lgkmcnt(0)\ns_barrier")
        reads(0, 0)
        mfmas(1, br)
        a(f"s_sub_u32 s48, s48, 1\ns_cmp_lg_u32 s48, 0\ns_cbranch_scc1 K_cloop{br}")
        if br == 0:
            stamp(a, 2)
            a.c("epilogue A")
            a(f"s_mov_b32 s66, {QSCALE}\ns_nop 7\ns_nop 1")
            for i in range(8, 24):
                a(f"v_cvt_pk_bf16_f32 v{104+i}, v{16+2*i}, v{17+2*i}")
            a(f"""buffer_store_dwordx4 v[112:115], v102, {WS}, s55 offen sc1
            buffer_store_dwordx4 v[116:119], v102, {WS}, s68 offen sc1
            buffer_store_dwordx4 v[120:123], v103, {WS}, s69 offen sc1
            buffer_store_dwordx4 v[124:127], v103, {WS}, s69 offen offset:256 sc1""")
            for i in range(16):
                a(f"v_mul_f32 v{16+i}, s66, v{16+i}")
            for i in range(8):
                a(f"v_cvt_pk_bf16_f32 v{104+i}, v{16+2*i}, v{17+2*i}")
            a(f"""buffer_store_dwordx4 v[104:107], v{V_L16}, {WS}, s52 offen sc1
            buffer_store_dwordx4 v[108:111], v{V_L16}, {WS}, s53 offen sc1
            v_mov_b32 v5, {EPS}""")
            for i in range(32):
                a(f"v_mov_b32 v{16+i}, v5")
            for i in range(16):
                a(f"v_mov_b32 v{48+i}, 0")
            a.c("launch tag must have arrived (loaded in the A loop)")
            a(f"s_waitcnt vmcnt(6)\nv_cmp_eq_u32 vcc, 0, v{V_T}\ns_cbranch_vccnz R_tag\nC_tag:")
            tail.append(f"R_tag:\ns_mov_b32 s65, {SPIN}\nRL_tag:\nbuffer_load_dword v{V_T}, v101, s[36:39], 0 offen sc1\ns_waitcnt vmcnt(0)\ns_sub_u32 s65, s65, 1\ns_cbranch_scc1 C_tag\nv_cmp_eq_u32 vcc, 0, v{V_T}\ns_cbranch_vccnz RL_tag\ns_branch C_tag")
            stamp(a, 3)
        else:
            stamp(a, 5)
            a.c("epilogue B")
            a(f"s_mov_b32 s66, {LOG2E}\ns_mov_b32 s67, {EPS}\ns_waitcnt lgkmcnt(0)\ns_nop 7\ns_nop 3")
            def phi(base):
                for i in range(16):
                    a(f"v_mul_f32 v{104+i}, s66, v{base+i}")
                for i in range(16):
                    a(f"v_exp_f32_e64 v{104+i}, v{104+i} clamp")
                for i in range(16):
                    a(f"v_max_f32 v{base+i}, s67, v{base+i}")
                for i in range(16):
                    a(f"v_add_f32 v{base+i}, v{base+i}, v{104+i}")
            phi(32)
            for i in range(16):
                a(f"v_cvt_pk_bf16_f32 v{64+i}, v{32+2*i}, v{33+2*i}")
            a(f"v_mov_b32 v80, {ONES}\nv_mov_b32 v81, v80\nv_mov_b32 v82, v80\nv_mov_b32 v83, v80\ns_nop 1")
            a(mfma(32, 64, 72, "0")); a(mfma(48, 64, 80, "0"))
            a(mfma(32, 68, 76)); a(mfma(48, 68, 80))
            phi(16)
            for i in range(8):
                a(f"v_cvt_pk_bf16_f32 v{104+i}, v{16+2*i}, v{17+2*i}")
            a(f"""s_add_u32 s52, s52, {PQ}
            s_add_u32 s53, s53, {PQ}
            buffer_store_dwordx4 v[104:107], v{V_L16}, {WS}, s52 offen sc1
            buffer_store_dwordx4 v[108:111], v{V_L16}, {WS}, s53 offen sc1
            s_mov_b32 s62, 0xffff
            s_mov_b32 s63, 0xffff""")
            for i in range(8):
                a(f"v_cndmask_b32 v{112+i}, v{48+i}, v{32+i}, s[62:63]")
            for i in range(8, 16):
                a(f"v_cndmask_b32 v{32+i}, v{32+i}, v{48+i}, s[62:63]")
            a(f"""s_lshl_b32 s40, s{S_W}, 11
            s_add_u32 s40, s40, {L_SCR}
            s_xor_b32 s42, s40, 2048
            v_xor_b32 v5, 256, v{V_L16}
            v_add_u32 v5, s42, v5
            v_add_u32 v6, s40, v{V_L16}
            ds_write_b128 v5, v[40:43]
            ds_write_b128 v5, v[44:47] offset:1024
            s_waitcnt lgkmcnt(0)""")
            stamp(a, 6)
            a(f"""s_barrier
            ds_read_b128 v[120:123], v6
            ds_read_b128 v[124:127], v6 offset:1024
            s_lshl_b32 s41, s41, 16
            s_lshl_b32 s42, s21, 11
            s_add_u32 s41, s41, s42
            s_add_u32 s41, s41, {KVP}
            s_waitcnt lgkmcnt(0)""")
            for i in range(8):
                a(f"v_add_f32 v{112+i}, v{112+i}, v{120+i}")
            a(f"buffer_store_dwordx4 v[112:115], v{V_L16}, {WS}, s41 offen sc1\nbuffer_store_dwordx4 v[116:119], v{V_L16}, {WS}, s41 offen offset:1024 sc1")
    Q, K, V, S, O, IDX, AK, AV, AVS = 8, [12, 16], [20, 28], [36, 52], 68, 84, 85, 86, 87
    FADDR, FVAL = 88, 89
    WOB, WOA = 96, 160
    PART, PQR = 160, 192
    a("K_att:")
    if PROF[0]: a("s_memtime s[88:89]")
    a.c("s61 = my q tile; V read address: data lanes follow the tile, the other lanes read the constant rows")
    a(f"""s_add_u32 s61, s61, s{S_W}
    s_lshl_b32 s40, s{S_W}, 10
    s_add_u32 s41, s40, {L_Q}
    v_add_u32 v5, s41, v{V_L16}
    ds_read_b128 {vr(Q,4)}, v5
    v_mov_b32 v{AK}, v{V_L16}
    ds_read_b128 {vr(K[0],4)}, v{AK}
    ds_read_b128 {vr(K[1],4)}, v{AK} offset:2048
    s_mov_b32 s62, 0xffff
    s_mov_b32 s63, 0xffff
    v_and_b32 v6, 11, v{V_LANE}
    v_cmp_ne_u32 vcc, 0, v6
    v_mov_b32 v6, {L_ONES-1024}
    v_mov_b32 v7, {L_ONES-1024+16}
    v_cndmask_b32 v6, v6, v7, vcc
    v_cndmask_b32 v{AV}, v6, v{V_L16}, s[62:63]
    v_mov_b32 v6, 8192
    v_cndmask_b32 v{AVS}, 0, v6, s[62:63]
    ds_read_b128 {vr(V[0],4)}, v{AV} offset:1024
    ds_read_b128 {vr(V[0]+4,4)}, v{AV} offset:1280
    v_mov_b32 v{IDX}, 0xdddddddd""")
    for i in range(16):
        a(f"v_mov_b32 v{O+i}, 0")
    a(f"""s_lshl_b32 s43, s60, 17
    s_add_u32 s43, s43, s40
    s_add_u32 s43, s43, {KV+32768}
    s_add_u32 s44, s40, 32768
    s_waitcnt lgkmcnt(3)""")
    a(mfma(S[0], K[0], Q, "0"))
    a.c("out tile s45 = (id&7)*8 + ((id>>3)&7); colblock s46 = id>>6; ct = w&3 (s18); kh = w>>2 (s19)")
    a(f"""s_and_b32 s45, s2, 7
    s_lshl_b32 s45, s45, 3
    s_bfe_u32 s40, s2, 0x30003
    s_add_u32 s45, s45, s40
    s_lshr_b32 s46, s2, 6
    s_and_b32 s18, s{S_W}, 3
    s_lshr_b32 s19, s{S_W}, 2
    s_lshl_b32 s47, s46, 2
    s_add_u32 s47, s47, s18
    s_lshl_b32 s48, s47, 15
    s_lshl_b32 s40, s19, 14
    s_add_u32 s48, s48, s40
    s_add_u32 s48, s48, {WOT}
    s_add_u32 s54, s48, 0x80000
    s_lshl_b32 s40, s60, 16
    s_lshl_b32 s49, s61, 10
    s_add_u32 s49, s49, s40
    s_add_u32 s49, s49, {PQ}
    s_lshl_b32 s50, s{S_W}, 13
    s_add_u32 s50, s50, s40
    s_add_u32 s50, s50, {KVP}
    s_lshl_b32 s51, s61, 15
    s_lshl_b32 s40, s60, 10
    s_add_u32 s51, s51, s40
    s_lshl_b32 s52, s45, 15
    s_lshl_b32 s40, s{S_W}, 12
    s_add_u32 s52, s52, s40""")
    vm = []
    def issue(tag, text):
        vm.append(tag); return text
    def waitfor(tag):
        idx = max(i for i, t in enumerate(vm) if t == tag)
        return len(vm) - 1 - idx
    side = {t: [] for t in range(64)}
    pre = {t: [] for t in range(65)}
    for i in range(12):
        side[i // 2].append(("dma", None))
    def wgid_code(rbexpr_v, cb_s, lines):
        pass
    X1, F2P, BM, F3P = P["X1"], P["F2POLL"], P["BMID"], P["F3POLL"]
    def do_x1():
        a("s_waitcnt vmcnt(0)")
        flag_store(1); vm.append("f2st")
        a("s_barrier")
        a.c("F2 flag addresses: lanes 0-3 partials (rb=4w+l), lane 4.. pq producer, lanes 16-31 wo_A, 32-47 wo_B producers")
        a(f"""s_lshr_b32 s40, s60, 2
        s_and_b32 s41, s40, 3
        s_lshl_b32 s41, s41, 6
        s_lshr_b32 s40, s40, 2
        s_add_u32 s40, s40, s41
        s_lshl_b32 s41, s{S_W}, 2
        v_add_u32 v5, s41, v{V_LANE}
        s_lshr_b32 s41, s61, 1
        v_mov_b32 v6, s41
        v_cmp_gt_u32 vcc, 4, v{V_LANE}
        s_and_b32 s41, s60, 3
        s_and_b32 s42, s60, 2
        s_and_b32 s53, s61, 1
        s_add_u32 s42, s42, s53
        v_cndmask_b32 v5, v6, v5, vcc
        v_mov_b32 v6, s42
        v_mov_b32 v7, s41
        v_cndmask_b32 v7, v6, v7, vcc
        v_and_b32 v6, 7, v5
        v_lshrrev_b32 v5, 3, v5
        v_lshlrev_b32 v5, 1, v5
        v_lshl_add_u32 v5, v6, 3, v5
        v_add_u32 v5, s40, v5
        v_lshl_add_u32 v5, v5, 3, v7
        v_and_b32 v6, 15, v{V_LANE}
        s_lshl_b32 s40, s19, 4
        v_add_u32 v6, s40, v6
        s_lshr_b32 s40, s47, 1
        s_lshl_b32 s40, s40, 3
        s_and_b32 s41, s47, 1
        s_add_u32 s40, s40, s41
        s_add_u32 s40, s40, 4
        v_lshl_add_u32 v6, v6, 6, s40
        v_bfe_u32 v7, v{V_LANE}, 5, 1
        v_lshl_add_u32 v6, v7, 1, v6
        v_cmp_gt_u32 vcc, 16, v{V_LANE}
        s_nop 1
        v_cndmask_b32 v5, v6, v5, vcc
        v_lshlrev_b32 v5, 7, v5
        v_add_u32 v{FADDR}, {FL+FPH}, v5
        s_lshl_b32 s40, s19, 8
        v_xor_b32 v90, s40, v{V_L16}""")
    pre[X1].append(do_x1)
    side[F2P].append(("vm", "f2", f"buffer_load_dword v{FVAL}, v{FADDR}, {WS}, 0 offen sc1"))
    pre[F2P+2].append(lambda: poll("f2", FADDR, FVAL, waitfor("f2")))
    t = F2P + 2
    lst = []
    for i in range(8):
        lst.append(("vm", "part", f"buffer_load_dwordx4 {vr(PART+4*i,4)}, v{V_L16}, {WS}, s50 offen offset:{(i&3)*1024} sc1" + ("\ns_add_u32 s50, s50, 4096" if i == 3 else "")))
    lst.append(("vm", "pq", f"buffer_load_dwordx4 {vr(PQR,4)}, v{V_L16}, {WS}, s49 offen sc1"))
    for k, it in enumerate(lst):
        side[t + k // 3].append(it)
    def wo_list(base, sreg):
        L = []
        for i in range(16):
            L.append(("vm", "wo", f"buffer_load_dwordx4 {vr(base+4*i,4)}, v90, {WS}, s{sreg} offen offset:{(i&3)*1024} sc1" + (f"\ns_add_u32 s{sreg}, s{sreg}, 4096" if (i & 3) == 3 else "")))
        return L
    for k, it in enumerate(wo_list(WOB, 54)):
        side[t + 3 + k // 2].append(it)
    def do_bmid():
        a.c("linear attention: reduce the kv/z partials, o = (pq kv) / (pq z + eps)")
        a(f"s_waitcnt vmcnt({waitfor('part')})")
        for pidx in range(1, 4):
            for i in range(8):
                a(f"v_add_f32 v{PART+i}, v{PART+i}, v{PART+8*pidx+i}")
        a(f"""s_lshl_b32 s40, s{S_W}, 11
        s_add_u32 s40, s40, {L_SCR}
        v_add_u32 v5, s40, v{V_L16}
        v_add_u32 v6, {L_SCR}, v{V_L16}
        ds_write_b128 v5, {vr(PART,4)}
        ds_write_b128 v5, {vr(PART+4,4)} offset:1024
        s_waitcnt lgkmcnt(0)
        s_barrier""")
        T0 = PART + 36
        bufs = [PART, PART+8, PART+16, PART+24, 196, 204, 212, 224]
        for w in range(8):
            for q in range(2):
                if w * 2 + q == 15: a("s_waitcnt lgkmcnt(8)")
                a(f"ds_read_b128 {vr(bufs[w]+4*q,4)}, v6 offset:{w*2048+q*1024}")
        a("s_waitcnt lgkmcnt(8)")
        for w in range(1, 8):
            if w == 4: a("s_waitcnt lgkmcnt(0)")
            for i in range(8):
                a(f"v_add_f32 v{PART+i}, v{PART+i}, v{bufs[w]+i}")
        for i in range(4):
            a(f"v_cvt_pk_bf16_f32 v{PART+8+i}, v{PART+2*i}, v{PART+2*i+1}")
        a(f"s_waitcnt vmcnt({waitfor('pq')})\ns_add_u32 s40, s51, {OB}")
        a(mfma(196, PART+8, PQR, "0"))
        a("s_nop 7\ns_nop 3")
        a(f"v_add_f32 v204, {EPS}, v204\nv_rcp_f32 v204, v204\ns_nop 0")
        for i in range(8):
            a(f"v_mul_f32 v{196+i}, v{196+i}, v204")
        for i in range(4):
            a(f"v_cvt_pk_bf16_f32 v{224+i}, v{196+2*i}, v{197+2*i}")
        a(issue("ob", f"buffer_store_dwordx4 v[224:227], v{V_L16}, {WS}, s40 offen sc1"))
        a.c("F3/F4 flag addresses: lane&3 -> head 4w+(lane&3): producer wg(head, rb8 = tile>>3), wave = tile&7")
        a(f"""v_and_b32 v5, 3, v{V_LANE}
        s_lshr_b32 s40, s45, 3
        s_lshl_b32 s40, s40, 5
        s_add_u32 s40, s40, s{S_W}
        s_lshl_b32 s40, s40, 3
        s_and_b32 s41, s45, 7
        s_add_u32 s40, s40, s41
        v_lshl_add_u32 v5, v5, 6, s40
        v_lshlrev_b32 v5, 7, v5
        v_add_u32 v{FADDR}, {FL+2*FPH}, v5""")
    pre[BM].append(do_bmid)
    for k, it in enumerate(wo_list(WOA, 48)):
        side[max(BM + 1, F2P + 13) + k // 2].append(it)
    def do_f3():
        a(f"s_waitcnt vmcnt({waitfor('ob')})")
        flag_store(2); vm.append("f3st")
    pre[BM + 7].append(do_f3)
    side[F3P].append(("vm", "f3", f"buffer_load_dword v{FVAL}, v{FADDR}, {WS}, 0 offen sc1"))
    pre[F3P+2].append(lambda: poll("f3", FADDR, FVAL, waitfor("f3")))
    for i in range(4):
        side[F3P + 2 + i // 2].append(("vm", "obt", (f"s_lshl_b32 m0, s{S_W}, 12\ns_add_u32 s40, s52, {OB}\n" if i == 0 else "") + f"buffer_load_dwordx4 v{V_L16}, {WS}, s40 offen offset:{i*1024} sc1 lds"))

    def ex(b, lo, hi):
        for i in range(lo, hi):
            a(f"v_exp_f32 v{S[b]+i}, v{S[b]+i}")
    def pv(b, f):
        a(f"v_smfmac_f32_32x32x32_bf16 {vr(O,16)}, {vr(V[b]+4*f,4)}, {vr(S[b]+8*f,8)}, v{IDX}")
    def put(item):
        if item[0] == "dma":
            a(f"s_mov_b32 m0, s44\ns_add_u32 s44, s44, 8192\nbuffer_load_dwordx4 v{V_L16}, {WS}, s43 offen sc1 lds\ns_add_u32 s43, s43, 8192")
        else:
            a(issue(item[1], item[2]))
    a("s_nop 3")
    akbase = 0; avbase = 0
    for t in range(64):
        b = t & 1; n = b ^ 1
        for f in pre[t]: f()
        items = list(side[t])
        ex(b, 0, 2)
        if t > 0:
            pv(n, 1)
        else:
            a("s_nop 0")
        if t < 63:
            a("s_waitcnt lgkmcnt(2)")
        if t + 2 < 64:
            if (t + 2) * 2048 - akbase > 65535:
                a(f"v_add_u32 v{AK}, 0x10000, v{AK}"); akbase += 0x10000
            a(f"ds_read_b128 {vr(K[b],4)}, v{AK} offset:{(t+2)*2048-akbase}")
        if items: put(items.pop(0))
        ex(b, 2, 6)
        if t < 63:
            a(mfma(S[n], K[n], Q, "0"))
            a(f"s_waitcnt lgkmcnt({1 if t + 2 < 64 else 0})")
            if (t + 1) % 4 == 0:
                a(f"v_add_u32 v{AV}, v{AVS}, v{AV}"); avbase += 8192
            a(f"ds_read_b128 {vr(V[n],4)}, v{AV} offset:{(t+1)*2048+1024-avbase}")
        if items: put(items.pop(0))
        ex(b, 6, 11)
        if t == 63:
            a("s_waitcnt lgkmcnt(0)")
        pv(b, 0)
        if t < 63:
            a(f"ds_read_b128 {vr(V[n]+4,4)}, v{AV} offset:{(t+1)*2048+1280-avbase}")
        while items: put(items.pop(0))
        ex(b, 11, 16)
    a("s_nop 1")
    pv(1, 1)
    if PROF[0]: a("s_memtime s[90:91]")
    a("s_nop 7\ns_nop 3")
    a(f"""v_cmp_lt_f32 vcc, 0x21800000, v{O+8}
    s_mov_b64 s[66:67], vcc
    v_cmp_gt_f32 vcc, 0x5d800000, v{O+8}
    s_and_b64 s[66:67], s[66:67], vcc
    s_cmp_eq_u64 s[66:67], -1
    s_cbranch_scc0 K_slow
    K_fin:""")
    C = 224
    sl = f"""K_slow:
    s_lshl_b32 s43, s60, 17
    s_add_u32 s43, s43, {KV}
    s_mov_b32 s44, s43
    s_mov_b32 s65, 64
    v_mov_b32 v5, 0xff800000
    K_sl1:
    buffer_load_dwordx4 {vr(K[0],4)}, v{V_L16}, {WS}, s44 offen sc1
    s_add_u32 s44, s44, 2048
    s_waitcnt vmcnt(0)
    {mfma(S[0], K[0], Q, "0")}
    s_nop 7
    s_nop 7
    """ + "\n".join(f"v_max3_f32 v5, v5, v{S[0]+2*i}, v{S[0]+2*i+1}" for i in range(8)) + f"""
    s_sub_u32 s65, s65, 1
    s_cmp_lg_u32 s65, 0
    s_cbranch_scc1 K_sl1
    v_mov_b32 v6, v5
    s_nop 1
    v_permlane32_swap_b32 v5, v6
    s_nop 1
    v_max_f32 v5, v5, v6
    """ + "\n".join(f"v_sub_f32 v{C+i}, 0, v5\nv_mov_b32 v{O+i}, 0" for i in range(16)) + f"""
    s_mov_b32 s65, 64
    K_sl2:
    buffer_load_dwordx4 {vr(K[0],4)}, v{V_L16}, {WS}, s43 offen sc1
    s_mov_b64 exec, s[62:63]
    buffer_load_dwordx4 {vr(V[0],4)}, v{V_L16}, {WS}, s43 offen offset:1024 sc1
    buffer_load_dwordx4 {vr(V[0]+4,4)}, v{V_L16}, {WS}, s43 offen offset:1280 sc1
    s_mov_b64 exec, -1
    s_add_u32 s43, s43, 2048
    s_waitcnt vmcnt(0)
    {mfma(S[0], K[0], Q, vr(C,16))}
    s_nop 7
    s_nop 7
    """ + "\n".join(f"v_exp_f32 v{S[0]+i}, v{S[0]+i}" for i in range(16)) + f"""
    s_nop 1
    v_smfmac_f32_32x32x32_bf16 {vr(O,16)}, {vr(V[0],4)}, {vr(S[0],8)}, v{IDX}
    v_smfmac_f32_32x32x32_bf16 {vr(O,16)}, {vr(V[0]+4,4)}, {vr(S[0]+8,8)}, v{IDX}
    s_sub_u32 s65, s65, 1
    s_cmp_lg_u32 s65, 0
    s_cbranch_scc1 K_sl2
    s_nop 7
    s_nop 7
    s_branch K_fin"""
    tail.append(sl)
    a(f"v_rcp_f32 v5, v{O+8}\ns_add_u32 s40, s51, {OA}")
    for i in range(8):
        a(f"v_mul_f32 v{O+i}, v{O+i}, v5")
    for i in range(4):
        a(f"v_cvt_pk_bf16_f32 v{8+i}, v{O+2*i}, v{O+2*i+1}")
    a(issue("oa", f"buffer_store_dwordx4 v[8:11], v{V_L16}, {WS}, s40 offen sc1"))
    ACC = 16; OF = 32
    srd(a, 28, 56, 57, 4*MB)
    a(f"""s_lshl_b32 s40, s19, 14
    v_add_u32 v5, s40, v{V_L16}
    s_lshl_b32 s40, s{S_W}, 11
    s_add_u32 s40, s40, 65536
    s_xor_b32 s41, s40, 8192
    v_add_u32 v6, s40, v{V_L16}
    v_add_u32 v7, s41, v{V_L16}
    v_and_b32 v64, 31, v{V_LANE}
    v_lshlrev_b32 v64, 11, v64
    v_lshrrev_b32 v65, 5, v{V_LANE}
    v_lshl_add_u32 v64, v65, 4, v64
    s_lshl_b32 s53, s45, 16
    s_lshl_b32 s40, s46, 8
    s_add_u32 s53, s53, s40
    s_lshl_b32 s40, s18, 6
    s_add_u32 s53, s53, s40
    s_lshl_b32 s40, s19, 5
    s_add_u32 s53, s53, s40
    v_add_u32 v{FADDR}, {FPH}, v{FADDR}""")
    for step, br in enumerate((1, 0)):
        WO = WOB if br == 1 else WOA
        lo = step * 32768
        if br == 1:
            a(f"s_waitcnt vmcnt({waitfor('obt')})\ns_barrier")
        else:
            poll("f4", FADDR, FVAL, waitfor("f4"))
            stamp(a, 7) if False else None
            a(f"s_lshl_b32 s40, s{S_W}, 12\ns_add_u32 m0, s40, 32768\ns_add_u32 s40, s52, {OA}")
            for i in range(4):
                a(f"buffer_load_dwordx4 v{V_L16}, {WS}, s40 offen offset:{i*1024} sc1 lds")
            a("s_waitcnt vmcnt(0)\ns_barrier")
        for i in range(8):
            a(f"ds_read_b128 {vr(OF+4*i,4)}, v5 offset:{lo+i*1024}")
        for i in range(16):
            a(f"s_waitcnt lgkmcnt({7 if i < 9 else 15-i})")
            a(mfma(ACC, WO+4*i, OF+4*(i&7), "0" if i == 0 else None))
            if i < 8:
                a(f"ds_read_b128 {vr(OF+4*i,4)}, v5 offset:{lo+(i+8)*1024}")
        if br == 1:
            a("s_waitcnt vmcnt(0)")
            flag_store(3)
        a("s_nop 7\ns_nop 3")
        a(f"ds_write_b128 v7, v[24:27] offset:{step*16384}\nds_write_b128 v7, v[28:31] offset:{step*16384+1024}\ns_waitcnt lgkmcnt(0)\ns_barrier")
        a(f"ds_read_b128 v[24:27], v6 offset:{step*16384}\nds_read_b128 v[28:31], v6 offset:{step*16384+1024}\ns_waitcnt lgkmcnt(0)")
        for i in range(8):
            a(f"v_add_f32 v{16+i}, v{16+i}, v{24+i}")
        for i in range(4):
            a(f"v_cvt_pk_bf16_f32 v{12+i}, v{16+2*i}, v{17+2*i}")
        a("s_nop 1\nv_permlane32_swap_b32 v12, v14\nv_permlane32_swap_b32 v13, v15")
        a(f"buffer_store_dwordx4 v[12:15], v64, s[28:31], s53 offen offset:{br*1024}")
        if br == 1:
            vm.clear()
            a(issue("f4", f"buffer_load_dword v{FVAL}, v{FADDR}, {WS}, 0 offen sc1"))
    if PROF[0]:
        a("s_waitcnt vmcnt(0)\ns_memtime s[92:93]\ns_memrealtime s[94:95]\ns_waitcnt lgkmcnt(0)")
        a(f"s_lshl_b32 s70, s2, 3\ns_add_u32 s70, s70, s{S_W}\ns_lshl_b32 s70, s70, 6\ns_add_u32 s40, s16, {PROF_OFF}\ns_addc_u32 s41, s17, 0\ns_mov_b32 s42, 0x100000\ns_mov_b32 s43, 0x20000\ns_mov_b64 exec, 1")
        a("v_mov_b32 v0, s72\nv_mov_b32 v1, s94")
        for i in range(1, 10):
            a(f"s_sub_u32 s71, s{74+2*i}, s74\nv_mov_b32 v{1+i}, s71")
        a("v_mov_b32 v11, 0\nv_mov_b32 v12, s70")
        a("buffer_store_dwordx4 v[0:3], v12, s[40:43], 0 offen\nbuffer_store_dwordx4 v[4:7], v12, s[40:43], 0 offen offset:16\nbuffer_store_dwordx4 v[8:11], v12, s[40:43], 0 offen offset:32")
    a("K_end:\ns_endpgm")
    for t in tail: a(t)

def main(path):
    a = Asm()
    a("; @launch grid=(256,1,1) block=(512,1,1) lds=163840")
    a('.amdgcn_target "amdgcn-amd-amdhsa--gfx950"\n.text')
    gen(a)
    t = a.text() + '.section .rodata,"a"\n' + kernel_desc(NAME + "_kernel", 240, 96)
    open(path, "w").write(t)
if __name__ == "__main__":
    path = f"cdna_kernels/{NAME}.s"
    for arg in sys.argv[1:]:
        if arg == "prof": PROF[0] = True
        elif "=" in arg:
            k, v = arg.split("="); P[k] = int(v)
        else: path = arg
    main(path)
```
